```python
import torch

def _softmax(x, axis=-1):
    return torch.softmax(x, dim=axis)
def _gelu(x):
    return torch.nn.functional.gelu(x, approximate="tanh")
def _silu(x):
    return torch.nn.functional.silu(x)
def _sigmoid(x):
    return torch.sigmoid(x)
def _layernorm(x, axis=-1, eps=1e-5):
    m = x.mean(dim=axis, keepdim=True)
    v = x.var(dim=axis, keepdim=True, unbiased=False)
    return (x - m) / torch.sqrt(v + eps)
def _scatter_add(tgt, idx, src, axis=0):
    return tgt.clone().index_add_(axis, idx, src)
def _segment_sum(src, seg, n):
    out = torch.zeros((n,) + src.shape[1:], dtype=src.dtype)
    return out.index_add_(0, seg, src)
def _pad(x, pw):
    flat = tuple(v for pair in reversed(pw) for v in pair)
    return torch.nn.functional.pad(x, flat)

kernel_name = 'gated_mix__linear_attn_block__glu_gated_swiglu__prompt'

def setup_inputs():

    _w = (lambda a: (lambda t: t.to(torch.bfloat16) if t.is_floating_point() else t)(torch.as_tensor(a)))
    def _A_setup():
        B, S, D = 1, 2048, 512
        return {
            "x": _w((lambda *s: torch.randn(*s, dtype=torch.bfloat16) * 0.05)(B, S, D)),
            "wqkv": _w((lambda *s: torch.randn(*s, dtype=torch.bfloat16) * 0.8)(D, 3 * D)),
            "wo": _w((lambda *s: torch.randn(*s, dtype=torch.bfloat16) * 0.05)(D, D)),
        }
    _A_in = _A_setup()

    def _B_setup():
        B, S, D, F = 1, 2048, 512, 1792
        return {
            "x": _w((lambda *s: torch.randn(*s, dtype=torch.bfloat16) * 0.05)(B, S, D)),
            "w1": _w((lambda *s: torch.randn(*s, dtype=torch.bfloat16) * 1.6)(D, F) * (2.0 / D) ** 0.5),
            "w3": _w((lambda *s: torch.randn(*s, dtype=torch.bfloat16) * 1.6)(D, F) * (2.0 / D) ** 0.5),
            "w2": _w((lambda *s: torch.randn(*s, dtype=torch.bfloat16) * 1.6)(F, D) * (2.0 / F) ** 0.5),
        }
    _B_in = _B_setup()

    return {
        "A_x": _A_in["x"],
        "A_wqkv": _A_in["wqkv"],
        "A_wo": _A_in["wo"],
        "B_x": _B_in["x"],
        "B_w1": _B_in["w1"],
        "B_w3": _B_in["w3"],
        "B_w2": _B_in["w2"],
        "gate_w": _w((lambda *s: torch.randn(*s, dtype=torch.bfloat16) * 0.05)(512) * 16.0),
    }

def reference(A_x, A_wqkv, A_wo, B_x, B_w1, B_w3, B_w2, gate_w):
    def _A_ref(x, wqkv, wo):
        B, S, D = x.shape
        H = 32; Dh = D // H
        qkv = (lambda x, *d: x.permute(*d))((x @ wqkv).reshape(B, S, 3, H, Dh), 2, 0, 3, 1, 4)
        q, k, v = qkv[0], qkv[1], qkv[2]
        phi = lambda t: torch.where(t > 0, t + 1, torch.exp(t)) + 1e-6
        pq, pk = phi(q), phi(k)
        kv = torch.einsum("bhsd,bhse->bhde", pk, v)
        z = torch.einsum("bhsd->bhd", pk)
        num = torch.einsum("bhqd,bhde->bhqe", pq, kv)
        den = torch.einsum("bhqd,bhd->bhq", pq, z)[..., None] + 1e-6
        o = num / den
        return (lambda x, *d: x.permute(*d))(o, 0, 2, 1, 3).reshape(B, S, D) @ wo

    def _B_ref(x, w1, w3, w2):
        gate = torch.einsum("bsd,df->bsf", x, w1)
        up = torch.einsum("bsd,df->bsf", x, w3)
        h = _silu(gate) * up
        out = torch.einsum("bsf,fd->bsd", h, w2)
        return out

    x = A_x
    g = _sigmoid((x * gate_w).sum(-1, keepdims=True))
    a = _A_ref(x, A_wqkv, A_wo)
    b = _B_ref(x, B_w1, B_w3, B_w2)
    return g * a + (1 - g) * b
```

```python
def V(n, cnt=1):
    return [('v', n + i) for i in range(cnt)]


def A(n, cnt=1):
    return [('a', n + i) for i in range(cnt)]


def S(n, cnt=1):
    return [('s', n + i) for i in range(cnt)]


def rs(regs):
    k, n = regs[0]
    if len(regs) == 1:
        return f"{k}{n}"
    for i, r in enumerate(regs):
        assert r == (k, n + i), regs
    return f"{k}[{n}:{n + len(regs) - 1}]"


class Tok:
    __slots__ = ('cnt', 'seq')

    def __init__(self, cnt, seq):
        self.cnt = cnt
        self.seq = seq


class Gen:
    def __init__(self):
        self.lines = []
        self.slot = 0
        self.lw = {}
        self.lastC = {}
        self.stdata = {}
        self.pend = {}
        self.seq = {'vm': 0, 'lgkm': 0}
        self.done = {'vm': 0, 'lgkm': 0}
        self.nbytes = 0
        self.stats = {}

    def raw(self, text, slots=1):
        self.lines.append("  " + text)
        self.slot += slots

    def comment(self, text):
        self.lines.append("  ; " + text)

    def label(self, name):
        self.lines.append(name + ":")

    def nop(self, n):
        while n > 0:
            k = min(n, 16)
            self.raw(f"s_nop {k - 1}", k)
            self.stats['nop'] = self.stats.get('nop', 0) + k
            n -= k

    def wait(self, toks):
        need = {}
        for t in toks:
            if t is None:
                continue
            if t.seq > self.done[t.cnt]:
                need[t.cnt] = max(need.get(t.cnt, 0), t.seq)
        if not need:
            return
        parts = []
        for c, sq in need.items():
            n = self.seq[c] - sq
            mx = 63 if c == 'vm' else 15
            n = min(n, mx)
            parts.append(f"{'vmcnt' if c == 'vm' else 'lgkmcnt'}({n})")
            self.done[c] = max(self.done[c], self.seq[c] - n)
        self.raw("s_waitcnt " + " ".join(parts))
        self.stats['wait'] = self.stats.get('wait', 0) + 1

    def wait_all(self, vm=True, lgkm=True):
        parts = []
        if vm:
            parts.append("vmcnt(0)")
            self.done['vm'] = self.seq['vm']
        if lgkm:
            parts.append("lgkmcnt(0)")
            self.done['lgkm'] = self.seq['lgkm']
        self.raw("s_waitcnt " + " ".join(parts))

    def last_tok(self, cnt):
        return Tok(cnt, self.seq[cnt])

    def ins(self, text, kind, reads=(), writes=(), cregs=None, opt=False, sub=None):
        reads = list(reads)
        writes = list(writes)
        creads = list(cregs) if cregs else []
        toks = []
        for r in reads + creads + writes:
            t = self.pend.get(r)
            if t is not None:
                toks.append(t)
        self.wait(toks)
        for r in reads + creads + writes:
            t = self.pend.get(r)
            if t is not None and t.seq <= self.done[t.cnt]:
                del self.pend[r]
        need = 0
        isvalu = kind in ('valu', 'trans')
        isvmem = kind in ('vload', 'vstore', 'dma')
        isds = kind in ('dsread', 'dswrite')

        def req(wslot, n):
            nonlocal need
            gap = self.slot - wslot - 1
            if gap < n:
                need = max(need, n - gap)

        for r in reads:
            w = self.lw.get(r)
            if w is None:
                continue
            ws, wk, wx = w
            if wx == 'dot' and not text.startswith('v_dot'):
                req(ws, 3)
            if wk == 'mfma':
                req(ws, 12)
            elif wk in ('valu', 'trans'):
                isv = isinstance(r, tuple) and r[0] in 'va'
                if isv:
                    if kind == 'mfma':
                        req(ws, 2)
                    if sub in ('dpp', 'permlane'):
                        req(ws, 2)
                    if sub == 'readlane':
                        req(ws, 1)
                    if wk == 'trans' and kind != 'trans':
                        req(ws, 1)
                else:
                    if isvalu:
                        req(ws, 2)
                    elif isvmem:
                        req(ws, 5)
                    else:
                        req(ws, 1)
            elif wk == 'salu':
                if r == 'm0' and kind == 'dma':
                    req(ws, 1)
        for r in creads:
            w = self.lw.get(r)
            if w is None:
                continue
            ws, wk, wx = w
            if wk == 'mfma':
                if wx == tuple(creads):
                    pass
                else:
                    req(ws, 10)
            elif wk in ('valu', 'trans'):
                req(ws, 2)
        for r in writes:
            w = self.lw.get(r)
            if w is not None:
                ws, wk, wx = w
                if wk == 'mfma':
                    if kind == 'mfma' and creads and wx == tuple(creads):
                        pass
                    else:
                        req(ws, 12)
            c = self.lastC.get(r)
            if c is not None and kind != 'mfma':
                req(c, 7)
            sd = self.stdata.get(r)
            if sd is not None:
                req(sd, 2)
        if need:
            self.nop(need)
        myslot = self.slot
        self.raw(text)
        self.stats[kind] = self.stats.get(kind, 0) + 1
        tok = None
        if isvmem and not opt:
            self.seq['vm'] += 1
            tok = Tok('vm', self.seq['vm'])
        elif isds:
            self.seq['lgkm'] += 1
            tok = Tok('lgkm', self.seq['lgkm'])
        for r in writes:
            if kind in ('vload', 'dsread'):
                self.pend[r] = tok
                self.lw.pop(r, None)
            else:
                self.lw[r] = (myslot, kind, tuple(writes) if kind == 'mfma' else ('dot' if text.startswith('v_dot') else None))
        for r in creads:
            self.lastC[r] = myslot
        return tok

    def salu(self, text, reads=(), writes=()):
        return self.ins(text, 'salu', reads, list(writes) + ['scc'])

    def valu(self, text, reads=(), writes=(), sub=None):
        return self.ins(text, 'valu', reads, writes, sub=sub)

    def trans(self, text, reads=(), writes=()):
        return self.ins(text, 'trans', reads, writes)

    def mfma(self, d, a, b, c=None):
        ctext = "0" if c is None else rs(c)
        return self.ins(f"v_mfma_f32_32x32x16_bf16 {rs(d)}, {rs(a)}, {rs(b)}, {ctext}", 'mfma',
                        reads=list(a) + list(b), writes=d, cregs=c)

    def barrier(self):
        self.raw("s_barrier")

    def v2(self, op, d, s0, s1, kind='valu'):
        r = []
        if isinstance(s0, list):
            r += s0
            t0 = rs(s0)
        else:
            t0 = str(s0)
        r += s1
        if op.startswith('v_fmac') or op.startswith('v_dot2c'):
            r += d
        return self.ins(f"{op} {rs(d)}, {t0}, {rs(s1)}", kind, r, d)

    def v1(self, op, d, s0, kind='valu', mod=""):
        r = []
        if isinstance(s0, list):
            r += s0
            t0 = rs(s0)
        else:
            t0 = str(s0)
        return self.ins(f"{op} {rs(d)}, {t0}{mod}", kind, r, d)

    def v3(self, op, d, *srcs):
        r = []
        ts = []
        for s in srcs:
            if isinstance(s, list):
                r += s
                ts.append(rs(s))
            else:
                ts.append(str(s))
        return self.ins(f"{op} {rs(d)}, " + ", ".join(ts), 'valu', r, d)

    def s2(self, op, d, a, b):
        r = []
        ts = []
        for s in (a, b):
            if isinstance(s, list):
                r += s
                ts.append(rs(s))
            elif s == 'm0':
                r.append('m0')
                ts.append('m0')
            else:
                ts.append(str(s))
        if d == 'm0':
            return self.salu(f"{op} m0, " + ", ".join(ts), r, ['m0'])
        return self.salu(f"{op} {rs(d)}, " + ", ".join(ts), r, d)

    def smov(self, d, a):
        r = a if isinstance(a, list) else []
        t = rs(a) if isinstance(a, list) else str(a)
        if d == 'm0':
            return self.ins(f"s_mov_b32 m0, {t}", 'salu', r, ['m0'])
        op = "s_mov_b64" if len(d) == 2 else "s_mov_b32"
        return self.ins(f"{op} {rs(d)}, {t}", 'salu', r, d)

    def _so(self, soff):
        if isinstance(soff, list):
            return rs(soff), soff
        return str(soff), []

    def bload(self, d, voff, srd, soff=0, off=0, flags="", opt=False):
        n = len(d)
        op = {1: "buffer_load_dword", 2: "buffer_load_dwordx2", 4: "buffer_load_dwordx4"}[n]
        st, sr = self._so(soff)
        o = f" offset:{off}" if off else ""
        assert 0 <= off < 4096
        return self.ins(f"{op} {rs(d)}, {rs(voff)}, {rs(srd)}, {st} offen{o}{flags}", 'vload',
                        reads=voff + srd + sr, writes=d, opt=opt)

    def bstore(self, d, voff, srd, soff=0, off=0, flags="", op=None, opt=False):
        n = len(d)
        if op is None:
            op = {1: "buffer_store_dword", 2: "buffer_store_dwordx2", 4: "buffer_store_dwordx4"}[n]
        st, sr = self._so(soff)
        o = f" offset:{off}" if off else ""
        assert 0 <= off < 4096
        myslot = None
        t = self.ins(f"{op} {rs(d)}, {rs(voff)}, {rs(srd)}, {st} offen{o}{flags}", 'vstore',
                     reads=d + voff + srd + sr, opt=opt)
        if n >= 3:
            for r in d:
                self.stdata[r] = self.slot - 1
        return t

    def dma(self, voff, srd, soff=0, off=0, flags=""):
        st, sr = self._so(soff)
        o = f" offset:{off}" if off else ""
        assert 0 <= off < 4096
        return self.ins(f"buffer_load_dwordx4 {rs(voff)}, {rs(srd)}, {st} offen{o}{flags} lds", 'dma',
                        reads=voff + srd + sr + ['m0'])

    def dsread(self, d, addr, off=0, tr=False):
        n = len(d)
        if tr:
            op = "ds_read_b64_tr_b16"
            assert n == 2
        else:
            op = {1: "ds_read_b32", 2: "ds_read_b64", 4: "ds_read_b128"}[n]
        assert 0 <= off < 65536, off
        o = f" offset:{off}" if off else ""
        return self.ins(f"{op} {rs(d)}, {rs(addr)}{o}", 'dsread', reads=addr, writes=d)

    def dswrite(self, addr, d, off=0):
        n = len(d)
        op = {1: "ds_write_b32", 2: "ds_write_b64", 4: "ds_write_b128"}[n]
        assert 0 <= off < 65536, off
        o = f" offset:{off}" if off else ""
        t = self.ins(f"{op} {rs(addr)}, {rs(d)}{o}", 'dswrite', reads=addr + d)
        if n >= 3:
            for r in d:
                self.stdata[r] = self.slot - 1
        return t

    def text(self):
        return "\n".join(self.lines) + "\n"
```

```python
import sys
from asmgen import *

KN = "gated_mix__linear_attn_block__glu_gated_swiglu__prompt_kernel"

HB_OFF = 0
KVP_OFF = 0xA00000
G_OFF = 0xB00000
FL_OFF = 0xB10000
ST_OFF = 0xC00000
WS_BYTES = 0x1000000

RING = 4
SLOT = 16384
PRIV0 = RING * SLOT
PRIV = 24576
LDS_BYTES = PRIV0 + 4 * PRIV
assert LDS_BYTES <= 163840

sX, sWQ, sW1, sW3, sW2, sWO, sWS, sOUT, sDBG, sGW = [S(8 + 4 * i, 4) for i in range(10)]
sKA = 48
sWave = S(3)
sR = S(4)
sJ = S(5)
sRB2 = S(6)
sCB2 = S(7)
sXoff = S(48)
sWAoff = S(49)
sGoff = S(50)
sPriv = S(51)
sLog2e = S(52)
sNLog2e = S(53)
sEps = S(54)
sT0 = S(55)
sT1 = S(56)
sT2 = S(57)
sM16 = S(58, 2)
sHBst = S(60)
sW2c = S(61)
sHBld = S(62)
sWAstep = S(63)
sGstep = S(64)
sSpin = S(65)
sExec = S(66, 2)
sRingW = S(68)
sRingWA = S(69)
sStamp = 70

vTid = V(0)
vLane = V(1)
vL16 = V(2)
vXD = [V(3 + i) for i in range(4)]
vXR = [V(7 + i) for i in range(4)]
vWAD = V(11)
vWARn = V(12)
vWARv = V(13)
vGD = [V(14 + i) for i in range(4)]
vGR = [V(18 + i) for i in range(4)]
vW2D = [V(22), V(23)]
vW2R = [V(24), V(25)]
vW2R2 = [V(26), V(27)]
vT = [V(28 + i) for i in range(4)]
WB = 32
ACCQ = 64
ACCG1 = 80
ACCG2 = 144
ACCK = 144
ACCV = 160
EPSB = 176
TMP = 192

LOG2E = 0x3FB8AA3B


class Params:
    LA = 3
    stamps = False
    phase = 2


def build(P):
    g = Gen()
    nstamp = [0]

    def stamp(name):
        if not P.stamps:
            return
        i = nstamp[0]
        assert i < 16
        nstamp[0] += 1
        g.raw(f"s_memtime s[{sStamp + 2 * i}:{sStamp + 2 * i + 1}]")
        g.wait_all(vm=False)

    g.salu("s_cmp_ge_u32 s2, 256", [('s', 2)])
    g.raw("s_cbranch_scc1 L_end")
    stamp("start")
    g.raw(f"s_load_dwordx16 s[{sKA}:{sKA + 15}], s[0:1], 0")
    g.raw(f"s_load_dwordx4 s[{sKA + 16}:{sKA + 19}], s[0:1], 64")
    g.raw(f"s_load_dwordx2 s[{sKA + 20}:{sKA + 21}], s[0:1], 80")
    g.v2("v_and_b32", vLane, 63, vTid)
    g.v2("v_lshrrev_b32", vT[0], 6, vTid)
    g.ins(f"v_readfirstlane_b32 {rs(sWave)}, {rs(vT[0])}", 'valu', vT[0], sWave, sub='readlane')
    g.v2("v_lshlrev_b32", vL16, 4, vLane)
    s2 = S(2)
    g.s2("s_and_b32", S(8), s2, 7)
    g.s2("s_lshr_b32", S(9), s2, 3)
    g.s2("s_and_b32", sR, S(8), 1)
    g.s2("s_lshl_b32", sR, sR, 3)
    g.s2("s_and_b32", S(10), S(9), 7)
    g.s2("s_add_u32", sR, sR, S(10))
    g.s2("s_lshr_b32", sJ, S(8), 1)
    g.s2("s_lshl_b32", sJ, sJ, 2)
    g.s2("s_lshr_b32", S(10), S(9), 3)
    g.s2("s_add_u32", sJ, sJ, S(10))
    g.s2("s_lshl_b32", sRB2, S(8), 2)
    g.s2("s_and_b32", S(10), S(9), 3)
    g.s2("s_add_u32", sRB2, sRB2, S(10))
    g.s2("s_lshr_b32", sCB2, S(9), 2)

    l = vLane
    t0, t1, t2, t3 = vT
    g.v2("v_lshrrev_b32", t0, 3, l)
    g.v2("v_and_b32", t1, 7, l)
    g.v2("v_lshrrev_b32", t2, 4, l)
    for q in range(4):
        g.v2("v_xor_b32", t3, t1, t2)
        if q & 1:
            g.v2("v_xor_b32", t3, 4, t3)
        g.v2("v_lshlrev_b32", t3, 4, t3)
        g.v3("v_lshl_add_u32", vXD[q], t0, 10, t3)
        if q:
            g.v2("v_add_u32", vXD[q], 7 * q * 1024, vXD[q])
    g.v2("v_lshrrev_b32", t0, 2, l)
    g.v2("v_mul_u32_u24", t0, 3072, t0)
    g.v2("v_and_b32", t1, 3, l)
    g.v3("v_lshl_add_u32", vWAD, t1, 4, t0)

    g.raw("s_waitcnt lgkmcnt(0)")
    sizes = {0: 2048 * 1024, 1: 512 * 3072, 2: 512 * 1024, 4: 512 * 3584, 5: 512 * 3584, 6: 1792 * 1024,
             7: 1024, 8: 2048 * 1024, 9: 256, 10: WS_BYTES}
    for srd, k in ((sX, 0), (sWQ, 1), (sWO, 2), (sW1, 4), (sW3, 5), (sW2, 6), (sGW, 7), (sOUT, 8), (sDBG, 9), (sWS, 10)):
        g.smov(srd[0:2], S(sKA + 2 * k, 2))
        g.smov([srd[2]], sizes[k])
        g.smov([srd[3]], 0x20000)
    g.s2("s_lshl_b32", sT0, sR, 2)
    g.s2("s_add_u32", sT0, sT0, sWave)
    g.s2("s_lshl_b32", sXoff, sT0, 15)
    g.s2("s_mul_i32", sHBst, sT0, 144)
    g.s2("s_mul_i32", sT1, sJ, 9)
    g.s2("s_add_u32", sHBst, sHBst, sT1)
    g.s2("s_lshl_b32", sHBst, sHBst, 10)
    g.s2("s_mul_i32", sWAoff, sWave, 16 * 3072)
    g.s2("s_lshl_b32", sT1, sJ, 6)
    g.s2("s_add_u32", sWAoff, sWAoff, sT1)
    g.smov(sWAstep, 64 * 3072)
    g.s2("s_mul_i32", sGoff, sWave, 16 * 3584)
    g.s2("s_mul_i32", sT1, sJ, 224)
    g.s2("s_add_u32", sGoff, sGoff, sT1)
    g.smov(sGstep, 64 * 3584)
    g.s2("s_mul_i32", sPriv, sWave, PRIV)
    g.s2("s_add_u32", sPriv, sPriv, PRIV0)
    g.s2("s_lshl_b32", sRingW, sWave, 12)
    g.s2("s_mul_i32", sRingWA, sWave, 3072)

    xtok = {}
    wtok = {}

    def dma_x(c):
        g.s2("s_add_u32", 'm0', sPriv, (c % 6) * 4096)
        g.s2("s_add_u32", sT2, sXoff, c * 128)
        for q in range(4):
            xtok[c] = g.dma(vXD[q], sX, sT2, off=q * 1024)

    def dma_w(c):
        slot = (c % RING) * SLOT
        if c < 8:
            g.s2("s_add_u32", 'm0', sRingWA, slot)
            for t in range(3):
                wtok[c] = g.dma(vWAD, sWQ, sWAoff, off=t * 1024)
            g.s2("s_add_u32", sWAoff, sWAoff, sWAstep)
        else:
            if c == 16:
                setup_gd(1)
                g.s2("s_sub_u32", sGoff, sGoff, 8 * 64 * 3584)
            for m in range(2):
                g.s2("s_add_u32", 'm0', sRingW, slot + m * 2048)
                for hg in range(2):
                    wtok[c] = g.dma(vGD[2 * m + hg], sW1 if m == 0 else sW3, sGoff, off=hg * 1024)
            g.s2("s_add_u32", sGoff, sGoff, sGstep)

    def setup_gd(grp):
        g.v2("v_lshrrev_b32", t0, 3, l)
        g.v2("v_mul_u32_u24", t0, 3584, t0)
        g.v2("v_and_b32", t1, 1, l)
        g.v3("v_lshl_add_u32", t0, t1, 4, t0)
        g.v3("v_bfe_u32", t1, l, 1, 2)
        g.v3("v_bfe_u32", t2, l, 4, 1)
        g.v2("v_lshlrev_b32", t2, 1, t2)
        g.v2("v_xor_b32", t1, t1, t2)
        for m in range(2):
            if m:
                g.v2("v_xor_b32", t1, 1, t1)
            g.v3("v_lshl_add_u32", vGD[2 * m], t1, 5, t0)
            if grp:
                g.v2("v_add_u32", vGD[2 * m], 128, vGD[2 * m])
                g.ins(f"v_cmp_eq_u32 vcc, 3, {rs(t1)}", 'valu', t1, ['vcc'])
                g.v1("v_mov_b32", t3, 0x7fff0000)
                g.ins(f"v_cndmask_b32 {rs(vGD[2*m])}, {rs(vGD[2*m])}, {rs(t3)}, vcc", 'valu',
                      vGD[2 * m] + t3 + ['vcc'], vGD[2 * m])
            g.v2("v_add_u32", vGD[2 * m + 1], 8 * 3584 - 1024, vGD[2 * m])

    for c in range(4):
        dma_x(c)
        dma_w(c)
    dma_x(4)
    dma_x(5)

    g.smov(sLog2e, LOG2E)
    g.smov(sNLog2e, LOG2E | 0x80000000)
    g.smov(sEps, 0x358637BD)
    g.smov([sM16[0]], 0xFFFF0000)
    g.smov([sM16[1]], 0xFFFF0000)
    g.s2("s_lshl_b32", sT0, sR, 8)
    g.s2("s_lshl_b32", sT1, sJ, 2)
    g.s2("s_add_u32", sT0, sT0, sT1)
    g.s2("s_add_u32", sT0, sT0, FL_OFF)
    sFlagOff = S(2)
    g.smov(sFlagOff, sT0)
    g.v1("v_mov_b32", t0, 0)
    g.ins("s_mov_b64 exec, 1", 'salu', [], ['exec'])
    clr_tok = g.bstore(t0, t0, sWS, sFlagOff, flags=" sc1")
    g.ins("s_mov_b64 exec, -1", 'salu', [], ['exec'])

    GX = TMP
    g.s2("s_lshl_b32", sT0, sR, 7)
    g.s2("s_lshl_b32", sT1, sJ, 3)
    g.s2("s_add_u32", sT0, sT0, sT1)
    g.s2("s_lshl_b32", sT1, sWave, 1)
    g.s2("s_add_u32", sT0, sT0, sT1)
    sGrow = S(62)
    g.smov(sGrow, sT0)
    g.s2("s_lshl_b32", sT0, sT0, 10)
    g.bload(V(GX, 4), vL16, sX, sT0)
    g.bload(V(GX + 4, 4), vL16, sX, sT0, off=1024)
    g.bload(V(GX + 8, 4), vL16, sGW, 0)

    g.v2("v_and_b32", t0, 31, l)
    g.v3("v_bfe_u32", t1, l, 1, 3)
    g.v2("v_lshrrev_b32", t2, 5, l)
    g.v2("v_xor_b32", t1, t1, t2)
    g.v2("v_lshlrev_b32", t0, 7, t0)
    g.v2("v_add_u32", t0, sPriv, t0)
    for t in range(4):
        g.v2("v_xor_b32", t3, 2 * t, t1)
        g.v3("v_lshl_add_u32", vXR[t], t3, 4, t0)
    g.v2("v_lshrrev_b32", t0, 5, l)
    g.v3("v_bfe_u32", t1, l, 2, 2)
    g.v3("v_lshl_add_u32", t0, t0, 3, t1)
    vKrow = V(TMP + 16)
    g.v1("v_mov_b32", vKrow, t0)
    g.v2("v_lshlrev_b32", t0, 6, t0)
    g.v3("v_bfe_u32", t1, l, 4, 1)
    g.v3("v_lshl_add_u32", t0, t1, 5, t0)
    g.v2("v_and_b32", t2, 3, l)
    g.v3("v_lshl_add_u32", vWARn, t2, 3, t0)
    g.v2("v_and_b32", t3, 1, t2)
    g.v2("v_lshrrev_b32", t2, 1, t2)
    g.v3("v_lshl_or_b32", t2, t3, 1, t2)
    vCp = V(TMP + 17)
    g.v1("v_mov_b32", vCp, t2)
    g.v3("v_lshl_add_u32", vWARv, t2, 3, t0)
    g.v2("v_lshlrev_b32", t0, 7, vKrow)
    g.v3("v_lshl_add_u32", t0, t1, 11, t0)
    g.v3("v_lshl_add_u32", t0, vCp, 3, t0)
    g.v3("v_bfe_u32", t2, l, 3, 1)
    g.v3("v_lshl_or_b32", t2, t2, 1, t1)
    for tt in range(4):
        g.v2("v_xor_b32", t3, tt, t2)
        g.v3("v_lshl_add_u32", vGR[tt], t3, 5, t0)
    setup_gd(0)
    g.v2("v_lshrrev_b32", t0, 3, l)
    g.v2("v_and_b32", t1, 7, l)
    g.v3("v_bfe_u32", t2, l, 4, 1)
    g.v2("v_lshlrev_b32", t2, 2, t2)
    g.v2("v_xor_b32", t1, t1, t2)
    g.v2("v_lshlrev_b32", t1, 4, t1)
    g.v3("v_lshl_add_u32", vW2D[0], t0, 10, t1)
    g.v2("v_add_u32", vW2D[1], 7 * 1024, vW2D[0])
    g.v2("v_lshlrev_b32", t0, 7, vKrow)
    g.v2("v_and_b32", t1, 1, l)
    g.v3("v_lshl_add_u32", t0, t1, 3, t0)
    g.v3("v_bfe_u32", t1, l, 1, 1)
    g.v3("v_bfe_u32", t2, l, 4, 1)
    g.v3("v_lshl_or_b32", t1, t2, 1, t1)
    g.v3("v_bfe_u32", t2, l, 3, 1)
    g.v3("v_lshl_or_b32", t1, t2, 2, t1)
    g.v3("v_lshl_add_u32", t2, t1, 4, t0)
    g.v2("v_xor_b32", t1, 4, t1)
    g.v3("v_lshl_add_u32", t3, t1, 4, t0)
    g.v2("v_add_u32", vW2R[0], sPriv, t2)
    g.v2("v_add_u32", vW2R[1], sPriv, t3)
    g.s2("s_lshl_b32", sT0, sWave, 14)
    g.v2("v_add_u32", vW2R2[0], sT0, t2)
    g.v2("v_add_u32", vW2R2[1], sT0, t3)
    g.s2("s_lshl_b32", sW2c, sCB2, 7)
    for i in range(16):
        g.v1("v_mov_b32", V(EPSB + i), sEps)

    for rr in range(2):
        acc = V(GX + 12 + rr)
        g.v1("v_mov_b32", acc, 0)
        for i in range(4):
            g.v2("v_dot2c_f32_bf16", acc, V(GX + 4 * rr + i), V(GX + 8 + i))
    for mod in ("quad_perm:[1,0,3,2] row_mask:0xf bank_mask:0xf", "quad_perm:[2,3,0,1] row_mask:0xf bank_mask:0xf",
                "row_half_mirror row_mask:0xf bank_mask:0xf", "row_mirror row_mask:0xf bank_mask:0xf",
                "row_bcast:15 row_mask:0xa bank_mask:0xf", "row_bcast:31 row_mask:0xc bank_mask:0xf"):
        for rr in range(2):
            acc = V(GX + 12 + rr)
            g.ins(f"v_add_f32 {rs(acc)}, {rs(acc)}, {rs(acc)} {mod}", 'valu', acc, acc, sub='dpp')
    for rr in range(2):
        acc = V(GX + 12 + rr)
        g.v2("v_mul_f32", acc, sNLog2e, acc)
        g.v1("v_exp_f32", acc, acc, kind='trans')
        g.v2("v_add_f32", acc, 1.0, acc)
        g.v1("v_rcp_f32", acc, acc, kind='trans')
    g.s2("s_lshl_b32", sT0, sGrow, 2)
    g.s2("s_add_u32", sT0, sT0, G_OFF)
    g.v1("v_mov_b32", t0, 0)
    g.ins("s_mov_b32 exec_lo, 0", 'salu', [], ['exec'])
    g.ins("s_mov_b32 exec_hi, 0x80000000", 'salu', [], ['exec'])
    g.bstore(V(GX + 12, 2), t0, sWS, sT0, flags=" sc1")
    g.ins("s_mov_b64 exec, -1", 'salu', [], ['exec'])
    g.s2("s_mul_i32", sHBld, sRB2, 288)
    g.s2("s_mul_i32", sT1, sWave, 36)
    g.s2("s_add_u32", sHBld, sHBld, sT1)
    g.s2("s_lshl_b32", sHBld, sHBld, 10)

    steps = []
    for c in range(24):
        nt = 3 if c < 8 else (4 if c < 16 else 3)
        for s in range(4):
            for t in range(nt):
                steps.append((c, s, t))
    NS = len(steps)
    first = {}
    for i, (c, s, t) in enumerate(steps):
        first.setdefault(c, i)
    first[24] = NS
    bg = [[] for _ in range(NS + 1)]

    def at(i, fn):
        bg[min(max(i, 0), NS)].append(fn)

    def spread(fns, i0, i1):
        n = len(fns)
        for k, f in enumerate(fns):
            at(i0 + (k * (i1 - i0)) // max(n, 1), f)

    def wbuf(i):
        return WB + 4 * (i % 8)

    def issue_reads(i):
        c, s, t = steps[i]
        slot = (c % RING) * SLOT
        b = wbuf(i)
        if c < 8:
            addr = vWARv if t == 2 else vWARn
            off = slot + s * 3072 + t * 1024
            g.dsread(V(b, 2), addr, off, tr=True)
            g.dsread(V(b + 2, 2), addr, off + 256, tr=True)
        else:
            off = slot + s * 4096
            g.dsread(V(b, 2), vGR[t], off, tr=True)
            g.dsread(V(b + 2, 2), vGR[t], off + 512, tr=True)

    xrd = {}

    def x_read(c, t):
        g.wait([xtok[c]])
        xrd[c] = g.dsread(A(16 * c + 4 * t, 4), vXR[t], (c % 6) * 4096)

    pre_barrier = {}
    post_barrier = {}

    def ring_barrier(c):
        toks = [wtok[c]] if c in wtok else []
        for f in pre_barrier.get(c, []):
            r = f()
            if r is not None:
                toks += r
        g.wait(toks)
        g.barrier()
        for f in post_barrier.get(c, []):
            f()
        if c >= 2 and c + RING - 2 < 24:
            dma_w(c + RING - 2)

    def do_mfma(i):
        c, s, t = steps[i]
        ks = (c % 8) * 4 + s
        xf = A(4 * ks, 4)
        wf = V(wbuf(i), 4)
        if c < 8:
            d = V([ACCQ, ACCK, ACCV][t], 16)
            cin = d if ks else (V(EPSB, 16) if t < 2 else None)
            if t == 0:
                g.mfma(d, wf, xf, cin)
            else:
                g.mfma(d, xf, wf, cin)
        else:
            d = V((ACCG1 if c < 16 else ACCG2) + 16 * t, 16)
            g.mfma(d, wf, xf, d if ks else None)

    LA = P.LA
    for c in range(1, 8):
        spread([(lambda c=c, t=t: x_read(c, t)) for t in range(4)], first[c - 1] + 2, first[c] - LA - 1)
    at(first[1] + 1, lambda: (g.wait([xrd[0]]), dma_x(6)))
    at(first[2] + 1, lambda: (g.wait([xrd[1]]), dma_x(7)))

    def phi_ops(base, n=16):
        ops = []
        for i in range(n):
            x = V(base + i)
            tm = V(TMP + 32 + (i % 8))
            ops.append(lambda x=x, tm=tm: g.v2("v_mul_f32", tm, sLog2e, x))
            ops.append(lambda x=x, tm=tm: g.v1("v_exp_f32_e64", tm, tm, kind='trans', mod=" clamp"))
            ops.append(lambda x=x, tm=tm: g.v2("v_max_f32", x, sEps, x))
            ops.append(lambda x=x, tm=tm: g.v2("v_add_f32", x, tm, x))
        out = []
        for b in range(0, n, 4):
            grp = [ops[4 * (b + k): 4 * (b + k) + 4] for k in range(4)]
            for st in range(4):
                for k in range(4):
                    out.append(grp[k][st])
        return out

    def cvt(d, a, b):
        g.v3("v_cvt_pk_bf16_f32", V(d), V(a), V(b))

    PK = TMP + 40
    PV = TMP + 48
    ONES = TMP + 56
    KVD = EPSB
    ZD = TMP
    kv = []
    kv += phi_ops(ACCK)
    for i in range(8):
        kv.append(lambda i=i: cvt(PV + i, ACCV + 2 * i, ACCV + 2 * i + 1))
    for i in range(4):
        kv.append(lambda i=i: g.v1("v_mov_b32", V(ONES + i), 0x3F803F80))
    for i in range(8):
        kv.append(lambda i=i: cvt(PK + i, ACCK + 2 * i, ACCK + 2 * i + 1))
    kv.append(lambda: g.mfma(V(KVD, 16), V(PK, 4), V(PV, 4), None))
    kv.append(lambda: g.mfma(V(ZD, 16), V(PK, 4), V(ONES, 4), None))
    kv.append(lambda: g.mfma(V(KVD, 16), V(PK + 4, 4), V(PV + 4, 4), V(KVD, 16)))
    kv.append(lambda: g.mfma(V(ZD, 16), V(PK + 4, 4), V(ONES, 4), V(ZD, 16)))
    spread(kv, first[8] + 4, first[9] + 6)
    kv2 = []
    for i in range(16):
        if i < 8:
            kv2.append(lambda i=i: g.ins(f"v_cndmask_b32 v{KVD+i}, v{KVD+i}, v{ZD+i}, {rs(sM16)}", 'valu',
                                         V(KVD + i) + V(ZD + i) + sM16, V(KVD + i)))
        else:
            kv2.append(lambda i=i: g.ins(f"v_cndmask_b32 v{KVD+i}, v{ZD+i}, v{KVD+i}, {rs(sM16)}", 'valu',
                                         V(KVD + i) + V(ZD + i) + sM16, V(KVD + i)))
    vScr = V(TMP + 20)
    vScrAll = V(TMP + 21)
    kv2.append(lambda: g.v2("v_add_u32", vScr, sPriv, vL16))
    kv2.append(lambda: g.s2("s_lshl_b32", sT0, sWave, 10))
    kv2.append(lambda: g.s2("s_add_u32", sT0, sT0, PRIV0))
    kv2.append(lambda: g.v2("v_add_u32", vScrAll, sT0, vL16))
    kvw = []
    for qd in range(4):
        kv2.append(lambda qd=qd: kvw.append(g.dswrite(vScr, V(KVD + 4 * qd, 4), qd * 1024)))
    spread(kv2, first[9] + 10, first[10] - LA - 1)
    pre_barrier.setdefault(10, []).append(lambda: [kvw[-1]])
    kv3 = []
    for ww in range(4):
        if ww < 3:
            kv3.append(lambda ww=ww: g.dsread(V(ZD + 4 * ww, 4), vScrAll, ww * PRIV))
        else:
            kv3.append(lambda: g.v2("v_add_u32", vScrAll, 3 * PRIV, vScrAll))
            kv3.append(lambda: g.dsread(V(ZD + 12, 4), vScrAll, 0))
    kvst = []

    def kv_sum():
        for i in range(4):
            g.v2("v_add_f32", V(ZD + i), V(ZD + i), V(ZD + 4 + i))
            g.v2("v_add_f32", V(ZD + 8 + i), V(ZD + 8 + i), V(ZD + 12 + i))
        for i in range(4):
            g.v2("v_add_f32", V(ZD + i), V(ZD + i), V(ZD + 8 + i))
        g.s2("s_lshl_b32", sT0, sJ, 4)
        g.s2("s_add_u32", sT0, sT0, sR)
        g.s2("s_lshl_b32", sT0, sT0, 2)
        g.s2("s_add_u32", sT0, sT0, sWave)
        g.s2("s_lshl_b32", sT0, sT0, 10)
        g.s2("s_add_u32", sT0, sT0, KVP_OFF)
        kvst.append(g.bstore(V(ZD, 4), vL16, sWS, sT0, flags=" sc1"))
    spread(kv3, first[10] - LA + 1, first[10] + 2)
    at(first[10] + 6, kv_sum)
    KVFLAG_B = 12
    pre_barrier.setdefault(KVFLAG_B, []).append(lambda: [kvst[-1], clr_tok])

    def only_wave0(name, fn):
        g.salu(f"s_cmp_lg_u32 {rs(sWave)}, 0", sWave)
        g.raw(f"s_cbranch_scc1 {name}")
        s0 = g.slot
        fn()
        g.label(name)
        g.slot = s0
        g.nop(1)

    def kv_flag():
        def f():
            g.s2("s_lshl_b32", sT0, sR, 4)
            g.s2("s_add_u32", sT0, sT0, sJ)
            g.v1("v_mov_b32", t0, 0)
            g.v1("v_mov_b32", t1, 1)
            g.ins("s_mov_b64 exec, 1", 'salu', [], ['exec'])
            g.bstore(t1, t0, sDBG, sT0, flags=" sc1", op="buffer_store_byte", opt=True)
            g.ins("s_mov_b64 exec, -1", 'salu', [], ['exec'])
        only_wave0("L_kvflag", f)
    post_barrier.setdefault(KVFLAG_B, []).append(kv_flag)

    KVPOLL_B = 15
    vL4 = V(TMP + 22)

    def kv_poll():
        def f():
            g.v2("v_lshlrev_b32", vL4, 2, vLane)
            g.smov(sSpin, 0)
            g.label("L_kvpoll")
            g.raw(f"buffer_load_dword {rs(t0)}, {rs(vL4)}, {rs(sDBG)}, 0 offen sc1")
            g.raw("s_waitcnt vmcnt(0)")
            g.raw(f"v_cmp_ne_u32 vcc, 0x01010101, {rs(t0)}")
            g.raw(f"s_add_u32 {rs(sSpin)}, {rs(sSpin)}, 1")
            g.raw(f"s_cmp_ge_u32 {rs(sSpin)}, 0x40000")
            g.raw("s_cbranch_scc1 L_kvpoll_done")
            g.raw("s_cmp_eq_u64 vcc, 0")
            g.raw("s_cbranch_scc1 L_kvpoll_done")
            g.raw("s_sleep 2")
            g.raw("s_branch L_kvpoll")
            g.label("L_kvpoll_done")
        only_wave0("L_kvpoll_skip", f)
        return None
    pre_barrier.setdefault(KVPOLL_B, []).append(kv_poll)

    KL = TMP
    KACC = TMP + 24
    KACC = TMP + 32

    def kvl_batch(b):
        g.s2("s_lshl_b32", sT0, sJ, 16)
        g.s2("s_lshl_b32", sT1, sWave, 10)
        g.s2("s_add_u32", sT0, sT0, sT1)
        g.s2("s_add_u32", sT0, sT0, KVP_OFF + b * 8 * 4096)
        for k in range(8):
            g.bload(V(KL + 4 * k, 4), vL16, sWS, sT0, flags=" sc1")
            if k < 7:
                g.s2("s_add_u32", sT0, sT0, 4096)

    def kvl_sum(b):
        ops = []
        for k in range(8):
            for i in range(4):
                if b == 0 and k == 0:
                    continue
                if b == 0 and k == 1:
                    ops.append(lambda k=k, i=i: g.v2("v_add_f32", V(KACC + i), V(KL + i), V(KL + 4 + i)))
                else:
                    ops.append(lambda k=k, i=i: g.v2("v_add_f32", V(KACC + i), V(KL + 4 * k + i), V(KACC + i)))
        return ops
    post_barrier.setdefault(KVPOLL_B, []).append(lambda: kvl_batch(0))
    spread(kvl_sum(0), first[16] + 8, first[17] - 2)
    at(first[17] - 1, lambda: kvl_batch(1))
    spread(kvl_sum(1), first[18] + 4, first[19] - LA - 3)
    kvsw = []

    def kvsum_write():
        g.s2("s_lshl_b32", sT0, sWave, 10)
        g.s2("s_add_u32", sT0, sT0, PRIV0)
        g.v2("v_add_u32", vScrAll, sT0, vL16)
        kvsw.append(g.dswrite(vScrAll, V(KACC, 4), 0))
    at(first[19] - LA - 2, kvsum_write)
    pre_barrier.setdefault(19, []).append(lambda: [kvsw[-1]])

    hb_tok = []

    def ffn_ops(acc, p, tb):
        ops = [[] for _ in range(8)]
        for i in range(8):
            gt = V(acc + i)
            u = V(acc + 8 + i)
            tm = V(tb + i)
            ops[i] = [
                lambda gt=gt, tm=tm: g.v2("v_mul_f32", tm, sNLog2e, gt),
                lambda tm=tm: g.v1("v_exp_f32", tm, tm, kind='trans'),
                lambda gt=gt, u=u: g.v2("v_mul_f32", u, gt, u),
                lambda tm=tm: g.v2("v_add_f32", tm, 1.0, tm),
                lambda tm=tm: g.v1("v_rcp_f32", tm, tm, kind='trans'),
                lambda tm=tm, u=u: g.v2("v_mul_f32", u, tm, u),
            ]
        out = []
        for b in range(0, 8, 4):
            for st in range(6):
                for k in range(4):
                    out.append(ops[b + k][st])
        for i in range(4):
            out.append(lambda i=i: cvt(acc + i, acc + 8 + 2 * i, acc + 9 + 2 * i))
        out.append(lambda: hb_store(V(acc, 4), p))
        return out

    def hb_store(regs, p):
        if p < 4:
            hb_tok.append(g.bstore(regs, vL16, sWS, sHBst, off=p * 1024, flags=" sc1"))
        else:
            g.s2("s_add_u32", sT0, sHBst, (p // 4) * 4096)
            hb_tok.append(g.bstore(regs, vL16, sWS, sT0, off=(p % 4) * 1024, flags=" sc1"))

    FT = TMP + 40
    g1e = []
    for tt in range(4):
        g1e += ffn_ops(ACCG1 + 16 * tt, tt, FT)
    spread(g1e, first[16] + 4, first[21] - 2)

    qe = phi_ops(ACCQ)
    PQ = TMP + 56
    for i in range(8):
        qe.append(lambda i=i: cvt(PQ + i, ACCQ + 2 * i, ACCQ + 2 * i + 1))
    spread(qe, first[11], first[14])
    oe = []
    vS0 = V(TMP + 36)
    oe.append(lambda: g.v2("v_add_u32", vS0, PRIV0, vL16))
    for qd in range(4):
        oe.append(lambda qd=qd: g.dsread(V(TMP + 4 * qd, 4), vS0, qd * 1024))
    oe2 = []
    for i in range(8):
        oe2.append(lambda i=i: cvt(TMP + 16 + i, TMP + 2 * i, TMP + 2 * i + 1))
    D0 = ACCQ
    D1 = TMP
    oe2.append(lambda: g.mfma(V(D0, 16), V(TMP + 16, 4), V(PQ, 4), None))
    oe2.append(lambda: g.mfma(V(D1, 16), V(TMP + 20, 4), V(PQ + 4, 4), None))
    oe3 = []
    for h, (D, nb, db) in enumerate(((D0, 0, 8), (D1, 8, 0))):
        den = V(D + db)
        oe3.append(lambda den=den: g.v2("v_add_f32", den, sEps, den))
        oe3.append(lambda den=den: g.v1("v_rcp_f32", den, den, kind='trans'))
    for h, (D, nb, db) in enumerate(((D0, 0, 8), (D1, 8, 0))):
        den = V(D + db)
        for i in range(8):
            oe3.append(lambda D=D, nb=nb, i=i, den=den: g.v2("v_mul_f32", V(D + nb + i), den, V(D + nb + i)))
        pb = D + db + 4
        for i in range(4):
            oe3.append(lambda D=D, nb=nb, i=i, pb=pb: cvt(pb + i, D + nb + 2 * i, D + nb + 2 * i + 1))
        oe3.append(lambda pb=pb, h=h: hb_store(V(pb, 4), 4 + h))
    spread(oe, first[19] - LA + 1, first[19] + 1)
    spread(oe2, first[19] + 4, first[19] + 8)
    spread(oe3, first[20] + 2, first[21] + 4)
    EARLY_B = 23

    def set_flag(val, name):
        def f():
            g.v1("v_mov_b32", t0, 0)
            g.v1("v_mov_b32", t1, val)
            g.ins("s_mov_b64 exec, 1", 'salu', [], ['exec'])
            g.bstore(t1, t0, sWS, sFlagOff, flags=" sc1", opt=True)
            g.ins("s_mov_b64 exec, -1", 'salu', [], ['exec'])
        only_wave0(name, f)
    pre_barrier.setdefault(EARLY_B, []).append(lambda: [hb_tok[-1]])
    post_barrier.setdefault(EARLY_B, []).append(lambda: set_flag(1, "L_flag1"))

    def slot_info(s):
        if s < 24:
            return s // 6, s % 6
        return (s - 24) // 3, 6 + (s - 24) % 3

    def w2_src(s):
        jl, p = slot_info(s)
        if p in (4, 5):
            return sWO, 128, 32 * jl + 16 * (p - 4)
        t = p if p < 4 else p - 2
        return sW2, 448, 112 * jl + 16 * t

    def w2_pos(s):
        if s < 10:
            return 4096 + 2048 * s
        if s < 16:
            return 4096 + 2048 * (s - 10)
        if s < 26:
            return 4096 + 2048 * ((s - 10) % 10)
        return 2048 * (s - 26)

    w2tok = {}
    w2rd = {}
    sW2w = S(63)
    sW2rowA = S(48)
    sW2rowO = S(49)

    def w2_setup():
        g.s2("s_mul_i32", sW2rowA, sWave, 448 * 1024)
        g.s2("s_add_u32", sW2rowA, sW2rowA, sW2c)
        g.s2("s_mul_i32", sW2rowO, sWave, 128 * 1024)
        g.s2("s_add_u32", sW2rowO, sW2rowO, sW2c)

    def w2_dma(s):
        srd, a, b = w2_src(s)
        base = sW2rowO if a == 128 else sW2rowA
        if s < 28:
            pos = w2_pos(s)
            g.wait([w2rd.get(pos)])
            g.s2("s_add_u32", 'm0', sPriv, pos)
        else:
            g.s2("s_lshl_b32", sT1, sWave, 14)
            g.s2("s_add_u32", 'm0', sT1, (s - 28) * 2048)
        g.s2("s_add_u32", sT1, base, b * 1024)
        g.dma(vW2D[0], srd, sT1)
        w2tok[s] = g.dma(vW2D[1], srd, sT1, off=1024)

    def w2_read(s, dst):
        g.wait([w2tok[s]])
        for nt in range(2):
            if s < 28:
                addr, off = vW2R[nt], w2_pos(s)
            else:
                addr, off = vW2R2[nt], (s - 28) * 2048
            g.dsread(dst[4 * nt:4 * nt + 2], addr, off, tr=True)
            tk = g.dsread(dst[4 * nt + 2:4 * nt + 4], addr, off + 512, tr=True)
        if s < 28:
            w2rd[w2_pos(s)] = tk

    if P.phase >= 2:
        at(first[8], w2_setup)
        W2_0, W2_1 = first[8] + 2, first[23]
        w2steps = [W2_0 + (k * (W2_1 - W2_0)) // 28 for k in range(28)]
        w2steps[26] = max(w2steps[26], first[20] + 2)
        w2steps[27] = max(w2steps[27], first[20] + 3)
        for s in range(28):
            at(w2steps[s], lambda s=s: w2_dma(s))
        RDL = 40
        for s in range(16):
            at(w2steps[s] + RDL, lambda s=s: w2_read(s, A(128 + 8 * s, 8)))
        for s in range(10, 26):
            prev = s - 10
            assert w2steps[prev] + RDL < w2steps[s], (s, w2steps)

    stamp("pro_done")
    for t in range(4):
        x_read(0, t)
    ring_barrier(0)
    for i in range(LA):
        issue_reads(i)
    stamp("first_data")
    for i in range(NS):
        c, s, t = steps[i]
        if i == first[8]:
            stamp("stageA_done")
        if i == first[16]:
            stamp("G1_done")
        do_mfma(i)
        j = i + LA
        if j < NS:
            cj = steps[j][0]
            if j == first[cj]:
                ring_barrier(cj)
            issue_reads(j)
        for f in bg[i]:
            f()
    for f in bg[NS]:
        f()
    stamp("G2_done")

    vFl = V(TMP + 36)
    AF = {}
    atok = {}

    def flag_poll(val, name):
        g.raw(f"s_mov_b32 {rs(sSpin)}, 0")
        g.label(name)
        g.raw(f"buffer_load_dword {rs(t0)}, {rs(vFl)}, {rs(sWS)}, 0 offen sc1")
        g.wait_all(lgkm=False)
        g.raw(f"v_cmp_gt_u32 vcc, {val}, {rs(t0)}")
        g.raw(f"s_add_u32 {rs(sSpin)}, {rs(sSpin)}, 1")
        g.raw(f"s_cmp_ge_u32 {rs(sSpin)}, 0x40000")
        g.raw(f"s_cbranch_scc1 {name}_done")
        g.raw("s_cmp_eq_u64 vcc, 0")
        g.raw(f"s_cbranch_scc1 {name}_done")
        g.raw("s_sleep 1")
        g.raw(f"s_branch {name}")
        g.label(name + "_done")
        g.nop(1)

    def a_load(ks, mt, regs):
        jl, p = slot_info(ks)
        kf = 9 * jl + p
        byte = (mt * 144 + kf) * 1024
        g.s2("s_add_u32", sT0, sHBld, byte & ~4095)
        AF[(ks, mt)] = regs
        atok[(ks, mt)] = g.bload(regs, vL16, sWS, sT0, off=byte & 4095, flags=" sc1")

    g2e = []
    for tt in range(3):
        g2e += ffn_ops(ACCG2 + 16 * tt, 6 + tt, FT)

    if P.phase >= 2:
        g.wait_all(vm=False)
        g.barrier()
        for s in range(28, 36):
            w2_dma(s)
        g.s2("s_lshr_b32", sT0, sRB2, 1)
        g.s2("s_lshl_b32", sT0, sT0, 8)
        g.s2("s_lshl_b32", sT1, sWave, 4)
        g.s2("s_add_u32", sT0, sT0, sT1)
        g.s2("s_add_u32", sT0, sT0, FL_OFF)
        g.v2("v_and_b32", vFl, 3, vLane)
        g.v2("v_lshlrev_b32", vFl, 2, vFl)
        g.v2("v_add_u32", vFl, sT0, vFl)
    for f in g2e:
        f()
    g.wait([hb_tok[-1]])
    g.barrier()
    set_flag(2, "L_flag2")
    stamp("late_flag")

    if P.phase >= 2:
        flag_poll(1, "L_poll1")
        stamp("poll1")
        for ks in range(16):
            for mt in range(2):
                a_load(ks, mt, A(8 * ks + 4 * mt, 4))
        vG = [V(TMP + 40), V(TMP + 41)]
        vOmg = [V(TMP + 42), V(TMP + 43)]
        g.v2("v_and_b32", t0, 31, vLane)
        g.v2("v_lshlrev_b32", t0, 2, t0)
        g.s2("s_lshl_b32", sT0, sRB2, 8)
        g.s2("s_add_u32", sT0, sT0, G_OFF)
        g.bload(vG[0], t0, sWS, sT0, flags=" sc1")
        g.bload(vG[1], t0, sWS, sT0, off=128, flags=" sc1")

        ACCB = 64
        ACCA = 128
        started = set()
        free = []
        nextload = [16]

        def w2regs(ks):
            if ks < 16:
                return A(128 + 8 * ks, 8)
            return V(WB + 8 * (ks % 4), 8)

        JLA = 2
        late_polled = [False]
        for ks in range(36):
            jl, p = slot_info(ks)
            part = ACCA if p in (4, 5) else ACCB
            if ks + JLA < 36 and ks + JLA >= 16:
                w2_read(ks + JLA, w2regs(ks + JLA))
            wr = w2regs(ks)
            for nt in range(2):
                for mt in range(2):
                    d = V(part + 32 * nt + 16 * mt, 16)
                    key = (part, nt, mt)
                    g.mfma(d, wr[4 * nt:4 * nt + 4], AF[(ks, mt)], d if key in started else None)
                    started.add(key)
            for mt in range(2):
                free.append(AF[(ks, mt)])
            if ks < 16:
                free.append(wr[0:4])
                free.append(wr[4:8])
            while nextload[0] < 36 and len(free) >= 2:
                nk = nextload[0]
                if nk >= 24 and not late_polled[0]:
                    if ks < P.late_poll_ks:
                        break
                    flag_poll(2, "L_poll2")
                    stamp("poll2")
                    late_polled[0] = True
                a_load(nk, 0, free.pop(0))
                a_load(nk, 1, free.pop(0))
                nextload[0] += 1
            if ks == 23 + 2:
                for mt in range(2):
                    g.v2("v_sub_f32", vOmg[mt], 1.0, vG[mt])
                for nt in range(2):
                    for mt in range(2):
                        for i in range(16):
                            r = V(ACCA + 32 * nt + 16 * mt + i)
                            g.v2("v_mul_f32", r, vG[mt], r)
        stamp("p2_mfma_done")
        RP = 272
        RW = 64 * RP
        vRW = V(TMP + 44)
        g.v2("v_and_b32", t0, 31, vLane)
        g.v2("v_mul_u32_u24", t0, RP, t0)
        g.v2("v_lshrrev_b32", t1, 5, vLane)
        g.v3("v_lshl_add_u32", t0, t1, 4, t0)
        g.s2("s_mul_i32", sT0, sWave, RW)
        g.v2("v_add_u32", vRW, sT0, t0)
        g.wait_all(vm=False)
        g.barrier()
        for mt in range(2):
            for nt in range(2):
                for rq in range(4):
                    base = 32 * nt + 16 * mt + 4 * rq
                    for i in range(4):
                        g.v2("v_fmac_f32", V(ACCA + base + i), vOmg[mt], V(ACCB + base + i))
                    g.dswrite(vRW, V(ACCA + base, 4), mt * 32 * RP + (32 * nt + 8 * rq) * 4)
        vRR = V(TMP + 45)
        g.v2("v_lshrrev_b32", t0, 2, vLane)
        g.s2("s_lshl_b32", sT0, sWave, 4)
        g.v2("v_add_u32", t0, sT0, t0)
        g.v2("v_mul_u32_u24", t1, RP, t0)
        g.v2("v_and_b32", t2, 3, vLane)
        g.v3("v_lshl_add_u32", vRR, t2, 6, t1)
        g.v2("v_lshlrev_b32", t0, 10, t0)
        g.v3("v_lshl_add_u32", t0, t2, 5, t0)
        g.s2("s_lshl_b32", sT0, sRB2, 16)
        g.s2("s_add_u32", sT0, sT0, sW2c)
        g.wait_all(vm=False)
        g.barrier()
        R0 = 64
        for ww in range(4):
            for qq in range(4):
                g.dsread(V(R0 + 16 * ww + 4 * qq, 4), vRR, ww * RW + qq * 16)
        for i in range(16):
            g.v2("v_add_f32", V(R0 + i), V(R0 + i), V(R0 + 16 + i))
            g.v2("v_add_f32", V(R0 + 32 + i), V(R0 + 32 + i), V(R0 + 48 + i))
        for i in range(16):
            g.v2("v_add_f32", V(R0 + i), V(R0 + i), V(R0 + 32 + i))
        for i in range(8):
            cvt(R0 + 16 + i, R0 + 2 * i, R0 + 2 * i + 1)
        g.bstore(V(R0 + 16, 4), t0, sOUT, sT0)
        g.bstore(V(R0 + 20, 4), t0, sOUT, sT0, off=16)
    if P.stamps:
        g.wait_all()
        stamp("end")
        g.s2("s_lshl_b32", sT0, sR, 4)
        g.s2("s_add_u32", sT0, sT0, sJ)
        g.s2("s_lshl_b32", sT0, sT0, 2)
        g.s2("s_add_u32", sT0, sT0, sWave)
        g.s2("s_lshl_b32", sT0, sT0, 7)
        g.s2("s_add_u32", sT0, sT0, ST_OFF)
        g.v1("v_mov_b32", t0, 0)
        g.ins("s_mov_b64 exec, 1", 'salu', [], ['exec'])
        for i in range(nstamp[0]):
            g.v1("v_mov_b32", V(64 + 2 * i), S(sStamp + 2 * i))
            g.v1("v_mov_b32", V(65 + 2 * i), S(sStamp + 2 * i + 1))
            g.bstore(V(64 + 2 * i, 2), t0, sWS, sT0, off=8 * i)
    g.label("L_end")
    g.raw("s_endpgm")

    hdr = open("gated_mix__linear_attn_block__glu_gated_swiglu__prompt.s.ref").read()
    hdr = "".join(ln + "\n" for ln in hdr.splitlines() if ln.startswith(";") and "@launch" not in ln)
    out = hdr + f"; @launch grid=(256,1,1) block=(256,1,1) lds={LDS_BYTES}\n"
    out += f""".amdgcn_target "amdgcn-amd-amdhsa--gfx950"
.text
.globl {KN}
.p2align 8
.type {KN},@function
{KN}:
"""
    out += g.text()
    out += f""".section .rodata,"a"
.p2align 6
.amdhsa_kernel {KN}
  .amdhsa_next_free_vgpr 512
  .amdhsa_next_free_sgpr 102
  .amdhsa_accum_offset 256
  .amdhsa_group_segment_fixed_size 0
  .amdhsa_kernarg_size 88
  .amdhsa_user_sgpr_count 2
  .amdhsa_user_sgpr_kernarg_segment_ptr 1
  .amdhsa_system_sgpr_workgroup_id_x 1
.end_amdhsa_kernel
"""
    return out, g


if __name__ == "__main__":
    P = Params()
    P.late_poll_ks = 8
    outp = "k.s"
    for a in sys.argv[1:]:
        if "=" in a:
            k, v = a.split("=")
            setattr(P, k, int(v))
        else:
            outp = a
    txt, g = build(P)
    open(outp, "w").write(txt)
    print(outp, g.stats, "lines", len(g.lines))
```
